```python
import torch

def _softmax(x, axis=-1):
    return torch.softmax(x, dim=axis)
def _gelu(x):
    return torch.nn.functional.gelu(x, approximate="tanh")
def _silu(x):
    return torch.nn.functional.silu(x)
def _sigmoid(x):
    return torch.sigmoid(x)
def _layernorm(x, axis=-1, eps=1e-5):
    m = x.mean(dim=axis, keepdim=True)
    v = x.var(dim=axis, keepdim=True, unbiased=False)
    return (x - m) / torch.sqrt(v + eps)
def _scatter_add(tgt, idx, src, axis=0):
    return tgt.clone().index_add_(axis, idx, src)
def _segment_sum(src, seg, n):
    out = torch.zeros((n,) + src.shape[1:], dtype=src.dtype)
    return out.index_add_(0, seg, src)
def _pad(x, pw):
    flat = tuple(v for pair in reversed(pw) for v in pair)
    return torch.nn.functional.pad(x, flat)

kernel_name = 'recurrent_scan__compressed_kv_cla__moe_arch_mod__prompt'

def setup_inputs():

    _w = (lambda a: (lambda t: t.to(torch.bfloat16) if t.is_floating_point() else t)(torch.as_tensor(a)))
    def _A_setup():
        B, H, Sq, Sk, D, M = 1, 32, 2048, 2048, 128, 512
        Dc = 4 * D
        return {
            "x": _w((lambda *s: torch.randn(*s, dtype=torch.bfloat16) * 0.05)(B, Sq, M)),
            "c_kv": _w((lambda *s: torch.randn(*s, dtype=torch.bfloat16) * 0.2)(B, Sk, Dc)),
            "w_q": _w((lambda *s: torch.randn(*s, dtype=torch.bfloat16) * 3.2)(M, H, D) * (M ** -0.5)),
            "w_uk": _w((lambda *s: torch.randn(*s, dtype=torch.bfloat16) * 3.2)(Dc, H, D) * (Dc ** -0.5)),
            "w_uv": _w((lambda *s: torch.randn(*s, dtype=torch.bfloat16) * 0.2)(Dc, H, D) * (Dc ** -0.5)),
            "w_o": _w((lambda *s: torch.randn(*s, dtype=torch.bfloat16) * 0.2)(H, D, M) * ((H * D) ** -0.5)),
        }
    _A_in = _A_setup()

    def _B_setup():
        B, S, D, F, C = 1, 2048, 512, 1792, 1
        return {
            "x": _w((lambda *s: torch.randn(*s, dtype=torch.bfloat16) * 0.05)(B, S, D)),
            "w_r": _w((lambda *s: torch.randn(*s, dtype=torch.bfloat16) * 1.6)(D)),
            "w_gate": _w((lambda *s: torch.randn(*s, dtype=torch.bfloat16) * 0.2)(D, F)),
            "w_up": _w((lambda *s: torch.randn(*s, dtype=torch.bfloat16) * 0.2)(D, F)),
            "w_down": _w((lambda *s: torch.randn(*s, dtype=torch.bfloat16) * 0.2)(F, D)),
        }
    _B_in = _B_setup()

    return {
        "A_x": _A_in["x"],
        "A_c_kv": _A_in["c_kv"],
        "A_w_q": _A_in["w_q"],
        "A_w_uk": _A_in["w_uk"],
        "A_w_uv": _A_in["w_uv"],
        "A_w_o": _A_in["w_o"],
        "B_x": _B_in["x"],
        "B_w_r": _B_in["w_r"],
        "B_w_gate": _B_in["w_gate"],
        "B_w_up": _B_in["w_up"],
        "B_w_down": _B_in["w_down"],
    }

def reference(A_x, A_c_kv, A_w_q, A_w_uk, A_w_uv, A_w_o, B_x, B_w_r, B_w_gate, B_w_up, B_w_down):
    def _A_ref(x, c_kv, w_q, w_uk, w_uv, w_o):
        B, Sq, M = x.shape[0], x.shape[1], x.shape[2]
        Sk = c_kv.shape[1]
        H, D = w_q.shape[1], w_q.shape[2]
        q = torch.einsum("bqm,mhd->bhqd", x, w_q)
        k = torch.einsum("bkc,chd->bhkd", c_kv, w_uk)
        v = torch.einsum("bkc,chd->bhkd", c_kv, w_uv)
        scores = torch.einsum("bhqd,bhkd->bhqk", q, k) * (D ** -0.5)
        off = Sk - Sq
        qi = torch.arange(Sq)[:, None]
        kj = torch.arange(Sk)[None, :]
        cmask = kj <= (qi + off)
        scores = torch.where(cmask[None, None], scores, -1e9)
        p = _softmax(scores, axis=-1)
        ctx = torch.einsum("bhqk,bhkd->bhqd", p, v)
        return torch.einsum("bhqd,hdm->bqm", ctx, w_o)

    def _B_ref(x, w_r, w_gate, w_up, w_down):
        B, S, D = x.shape
        C = 1
        r = x @ w_r
        idx = torch.argsort(-r, axis=-1)[:, :C]
        idx_e = (lambda x, n, axis: torch.repeat_interleave(x, n, dim=axis))(idx.reshape(B, C, 1), D, axis=2)
        x_sel = (lambda x, i, axis: torch.take_along_dim(x, i, dim=axis))(x, idx_e, axis=1)
        g = _silu(x_sel @ w_gate)
        u = x_sel @ w_up
        y = (g * u) @ w_down
        r_sel = _sigmoid((lambda x, i, axis: torch.take_along_dim(x, i, dim=axis))(r, idx, axis=1))
        y = y * r_sel.reshape(B, C, 1)
        b_off = (torch.arange(B) * S).reshape(B, 1)
        flat_idx = (idx + b_off).reshape(B * C)
        zero = (x * 0.0).reshape(B * S, D)
        upd = _scatter_add(zero, flat_idx, y.reshape(B * C, D), axis=0)
        return x + upd.reshape(B, S, D)

    x = A_x
    xn = _layernorm(x, axis=-1)
    s = _A_ref(xn, A_c_kv, A_w_q, A_w_uk, A_w_uv, A_w_o)
    g = _silu(_B_ref(xn, B_w_r, B_w_gate, B_w_up, B_w_down))
    return x + s * g
```

```python
import re

class Asm:
    def __init__(self):
        self.lines = []
    def __call__(self, s):
        for l in s.split("\n"):
            l = l.strip()
            if l:
                self.lines.append(l)
    def label(self, n): self.lines.append(n + ":")
    def c(self, s): self.lines.append("; " + s)
    def text(self): return "\n".join(self.lines) + "\n"

def R(p, b, n=1):
    return f"{p}{b}" if n == 1 else f"{p}[{b}:{b+n-1}]"
def v(b, n=1): return R("v", b, n)
def a(b, n=1): return R("a", b, n)
def s(b, n=1): return R("s", b, n)

_reg = re.compile(r"^-?\|?(?:abs\()?([vas])(?:(\d+)|\[(\d+):(\d+)\])\)?\|?$")
def regs(op):
    op = op.strip()
    if op in ("vcc", "exec", "m0", "scc"): return {op}
    if op in ("vcc_lo", "vcc_hi"): return {"vcc"}
    if op in ("exec_lo", "exec_hi"): return {"exec"}
    m = _reg.match(op)
    if not m: return set()
    p = m.group(1)
    if m.group(2) is not None: return {p + m.group(2)}
    return {p + str(i) for i in range(int(m.group(3)), int(m.group(4)) + 1)}

TRANS = ("v_exp_f32", "v_log_f32", "v_rcp_f32", "v_rsq_f32", "v_sqrt_f32", "v_sin_f32", "v_cos_f32", "v_rcp_iflag_f32")

class Ins:
    __slots__ = ("text", "op", "ops", "mods", "dst", "src", "kind", "srcA", "srcC", "lds", "dpp", "wide")
    def __init__(self, text):
        self.text = text
        t = text.split(";")[0].strip()
        parts = t.split(None, 1)
        self.op = parts[0]
        rest = parts[1] if len(parts) > 1 else ""
        toks = [x.strip() for x in rest.split(",")] if rest else []
        mods = []
        if toks:
            last = toks[-1].split()
            toks[-1] = last[0] if last else ""
            mods = last[1:]
        self.ops, self.mods = toks, mods
        op = self.op
        self.dst, self.src = set(), set()
        self.srcA, self.srcC = set(), set()
        self.lds = "lds" in mods
        self.dpp = any(m.startswith(("row_", "quad_perm", "wave_")) for m in mods) or op.endswith("_dpp")
        self.wide = False
        rs = [regs(o) for o in toks]
        U = lambda l: set().union(*l) if l else set()
        if op.startswith("v_mfma"):
            self.kind = "mfma"; self.dst = rs[0]; self.srcA = rs[1] | rs[2]; self.srcC = rs[3]; self.src = self.srcA | self.srcC
        elif op.startswith("v_"):
            self.kind = "valu"
            if op.startswith("v_permlane") and "swap" in op or op.startswith("v_swap"):
                self.dst = rs[0] | rs[1]; self.src = rs[0] | rs[1]
            elif op.startswith(("v_add_co", "v_sub_co", "v_addc_co", "v_subb_co", "v_div_scale", "v_mad_u64")):
                self.dst = rs[0] | rs[1]; self.src = U(rs[2:])
            elif op == "v_nop":
                pass
            else:
                self.dst = rs[0]; self.src = U(rs[1:])
                if op.startswith(("v_fmac", "v_dot2c", "v_writelane")) or self.dpp or "sdwa" in op: self.src |= rs[0]
                if op.startswith("v_cmpx"): self.dst |= {"exec"}
                if op.startswith("v_div_fmas"): self.src |= {"vcc"}
        elif op.startswith("ds_"):
            self.kind = "ds"
            if op.startswith(("ds_read", "ds_bpermute", "ds_permute", "ds_swizzle")):
                self.dst = rs[0]; self.src = U(rs[1:])
            else:
                self.src = U(rs)
        elif op.startswith(("buffer_", "global_")):
            self.kind = "vmem"
            if op in ("buffer_inv", "buffer_wbl2"):
                pass
            elif "load" in op and not self.lds and "_lds_" not in op:
                self.dst = rs[0]; self.src = U(rs[1:])
            elif "atomic" in op and "sc0" in mods:
                self.dst = rs[0]; self.src = U(rs)
            else:
                self.src = U(rs)
                if self.lds or "_lds_" in op: self.src |= {"m0"}; self.lds = True
                if "store" in op and ("x3" in op or "x4" in op):
                    self.wide = True
                    self.srcA = rs[0] if op.startswith("buffer") else rs[1]
        elif op.startswith(("s_load", "s_memtime", "s_memrealtime", "s_buffer_load")):
            self.kind = "smem"; self.dst = rs[0]; self.src = U(rs[1:])
        elif op.startswith("s_"):
            self.kind = "salu"
            if op.startswith(("s_cmp", "s_bitcmp")):
                self.src = U(rs); self.dst = {"scc"}
            elif op.startswith(("s_waitcnt", "s_nop", "s_barrier", "s_branch", "s_endpgm", "s_setprio", "s_sleep", "s_setpc")):
                self.src = U(rs)
            elif op.startswith("s_cbranch"):
                self.src = {"vcc"} if "vcc" in op else ({"exec"} if "exec" in op else {"scc"})
            else:
                self.dst = rs[0] if rs else set(); self.src = U(rs[1:])
                if "saveexec" in op: self.dst |= {"exec"}; self.src |= {"exec"}
        else:
            raise ValueError("unknown instr " + text)

def passes(op):
    if "16x16x32" in op: return 4
    if "32x32x16" in op: return 8
    raise ValueError(op)

def lint_trace(trace, name=""):
    probs = []
    hist = []
    pos = 0
    vm = []
    lg = []
    last_scc = ""
    def need(prod_pos, n, why, cur, prod):
        d = pos - prod_pos - 1
        if d < n:
            probs.append(f"{name}: hazard {why}: need {n} have {d}\n    {prod.text}\n    {cur.text}")
    for text in trace:
        I = Ins(text)
        if I.op == "s_waitcnt":
            t = text
            m = re.search(r"vmcnt\((\d+)\)", t)
            if m:
                n = int(m.group(1))
                if len(vm) > n: vm = vm[len(vm)-n:] if n else []
            m = re.search(r"lgkmcnt\((\d+)\)", t)
            if m:
                n = int(m.group(1))
                if n == 0: lg = []
                elif not any(x[1] for x in lg) and len(lg) > n: lg = lg[len(lg)-n:]
        touched = I.src | I.dst
        if I.kind == "salu":
            if I.op.startswith(("s_cselect", "s_cbranch_scc")) and not last_scc.startswith(("s_cmp", "s_bitcmp")):
                probs.append(f"{name}: SCC consumer {text} last writer {last_scc}")
            if I.op.startswith("s_addc") and not (hist and hist[-1][1].op == "s_add_u32"):
                probs.append(f"{name}: s_addc not right after s_add: {text}")
            if not I.op.startswith(("s_mov", "s_cselect", "s_waitcnt", "s_nop", "s_barrier", "s_branch", "s_cbranch", "s_mul_i32", "s_call", "s_setpc", "s_endpgm", "s_setprio", "s_sleep", "s_getpc", "s_mul_hi", "s_getreg")):
                last_scc = text
        for d in vm:
            if d & touched: probs.append(f"{name}: vmcnt: touches in-flight load dst {sorted(d & touched)[:4]}: {text}")
        for d, _ in lg:
            if d & touched: probs.append(f"{name}: lgkmcnt: touches in-flight lds/smem dst {sorted(d & touched)[:4]}: {text}")
        for (p, P) in hist[-24:]:
            if P.kind == "valu":
                vd = {r for r in P.dst if r[0] in "va" and r not in ("vcc",)}
                sd = {r for r in P.dst if r[0] == "s" or r == "vcc"}
                if I.kind == "mfma" and vd & I.src: need(p, 2, "VALU->MFMA src", I, P)
                if I.kind == "valu":
                    if P.op.startswith(TRANS) and not I.op.startswith(TRANS) and vd & I.src: need(p, 1, "trans->valu", I, P)
                    if I.op.startswith(("v_readlane", "v_readfirstlane")) and vd & I.src: need(p, 1, "valu->readlane", I, P)
                    if I.dpp and vd & I.src: need(p, 2, "valu->dpp", I, P)
                    if I.op.startswith("v_permlane") and vd & I.src: need(p, 2, "valu->permlane", I, P)
                    if sd & I.src:
                        if I.op.startswith(("v_readlane", "v_writelane")): need(p, 4, "valu sgpr->lane sel", I, P)
                        elif I.op.startswith("v_div_fmas"): need(p, 4, "vcc->div_fmas", I, P)
                        else: need(p, 2, "valu sgpr->valu const", I, P)
                    if "sdwa" in P.op and vd & touched: need(p, 1, "sdwa->valu", I, P)
                if P.op.startswith(TRANS) and I.kind in ("vmem", "ds") and vd & I.src: need(p, 1, "trans->mem", I, P)
                if I.kind == "vmem" and sd & I.src: need(p, 5, "valu sgpr->vmem", I, P)
                if "exec" in P.dst: need(p, 5, "valu exec write (avoid)", I, P) if I.kind in ("mfma",) or I.dpp else None
            elif P.kind == "mfma":
                n = passes(P.op)
                tbl = {4: (8, 6, 3), 8: (12, 10, 7)}[n]
                if I.kind == "mfma":
                    if P.dst & I.srcA: need(p, tbl[0], "MFMA D->MFMA A/B", I, P)
                    if P.dst & I.srcC and not (P.dst == I.srcC and passes(I.op) == n): need(p, tbl[1], "MFMA D->MFMA C overlap", I, P)
                    if P.dst & I.dst and not (P.dst == I.srcC): need(p, tbl[1], "MFMA D->MFMA D WAW (conservative)", I, P)
                elif I.kind in ("valu", "vmem", "ds"):
                    if P.dst & touched: need(p, tbl[0], "MFMA D->VALU/MEM", I, P)
                    if I.kind == "valu" and P.srcC & I.dst: need(p, tbl[2], "MFMA C WAR VALU", I, P)
            elif P.kind == "salu":
                if "m0" in P.dst and I.kind == "vmem" and I.lds: need(p, 1, "m0->lds dma", I, P)
            elif P.kind == "vmem" and P.wide:
                if P.srcA & I.dst: need(p, 2 if I.kind in ("valu", "mfma") else 1, "wide store data WAR", I, P)
        if I.kind == "vmem" and I.op not in ():
            vm.append(set(I.dst))
            if len(vm) > 63: probs.append(f"{name}: more than 63 vmem outstanding at {text}"); vm = vm[-63:]
        elif I.kind == "ds": lg.append((set(I.dst), False))
        elif I.kind == "smem": lg.append((set(I.dst), True))
        hist.append((pos, I))
        if I.op == "s_nop": pos += int(I.ops[0], 0) + 1
        else: pos += 1
        if I.op == "s_nop":
            pass
    return probs

def make_trace(lines, entry, taken=None, loops=2, maxlen=200000):
    taken = taken or set()
    idx = {l[:-1]: i for i, l in enumerate(lines) if l.endswith(":") and not l.startswith(";")}
    pc = idx[entry]
    cnt = {}
    out = []
    stack = []
    while len(out) < maxlen:
        l = lines[pc]
        t = l.split(";")[0].strip()
        if not t or t.endswith(":") or t.startswith("."):
            pc += 1; continue
        out.append(t)
        op = t.split()[0]
        if op == "s_endpgm": break
        if op == "s_branch":
            pc = idx[t.split()[1]]; continue
        if op == "s_call_b64":
            stack.append(pc + 1); pc = idx[t.split(",")[1].strip()]; continue
        if op == "s_setpc_b64":
            pc = stack.pop(); continue
        if op.startswith("s_cbranch"):
            tgt = t.split()[1]
            if idx[tgt] <= pc:
                cnt[pc] = cnt.get(pc, 0) + 1
                if cnt[pc] < loops:
                    pc = idx[tgt]; continue
                cnt[pc] = 0
            elif tgt in taken or "*" in taken and tgt.startswith(tuple(x for x in taken if x != "*")):
                pc = idx[tgt]; continue
        pc += 1
    return out

_tagw = re.compile(r"(vmcnt|lgkmcnt)\(@(\w+)\)")
def resolve_waits(lines):
    out = list(lines)
    for i, l in enumerate(out):
        while True:
            m = _tagw.search(out[i])
            if not m: break
            cls, tag = m.group(1), m.group(2)
            n = 0
            j = i - 1
            while True:
                assert j >= 0, f"tag {tag} not found"
                t = out[j]
                if re.search(r"@t:" + tag + r"\b", t): break
                op = t.split()[0] if t.split() and "@nc" not in t else ""
                assert not (t.endswith(":") and "LOOP" in t), f"tag {tag} crosses loop label {t}"
                if cls == "vmcnt" and op.startswith(("buffer_", "global_")): n += 1
                if cls == "lgkmcnt" and op.startswith("ds_"): n += 1
                if cls == "lgkmcnt" and op.startswith(("s_load", "s_mem")): n = -10000
                j -= 1
            n = max(0, min(n, 40 if cls == "vmcnt" else 15))
            out[i] = out[i][:m.start()] + f"{cls}({n})" + out[i][m.end():]
    return out
```

```python
import sys, importlib
from asm import *
KN = "recurrent_scan__compressed_kv_cla__moe_arch_mod__prompt"
def build(mods, out, lint=True):
    ref = open(f"cdna_kernels/{KN}.s.ref").read().split("\n")
    head = [l for l in ref if l.startswith(";") and "@launch" not in l and "Override launch" not in l and "grid=ceil" not in l and not l.startswith("; v1")]
    head = [l for l in head if l.startswith("; Kernarg") or l.startswith(";   offset")]
    A = Asm()
    descs = []
    launches = []
    for m in mods:
        mod = importlib.import_module(m)
        d = mod.gen(A)
        A.lines = resolve_waits(A.lines)
        descs.append(d)
        launches.append(f"; @launch kernel={mod.NAME} grid=({getattr(mod,'GRID',256)},1,1) block=({getattr(mod,'BLOCK',256)},1,1) lds={mod.LDS}")
        if lint:
            for taken in getattr(mod, "TRACES", [set()]):
                tr = make_trace(A.lines, mod.NAME, taken=taken, loops=3)
                probs = lint_trace(tr, f"{mod.NAME}{sorted(taken)}")
                seen = set()
                for p in probs:
                    if p not in seen:
                        seen.add(p)
                        if len(seen) <= 6: print("LINT", p)
                print(f"lint {mod.NAME} {sorted(taken)}: {len(tr)} instrs traced, {len(seen)} problems")
    txt = "\n".join(head + launches) + "\n"
    txt += '.amdgcn_target "amdgcn-amd-amdhsa--gfx950"\n.text\n'
    txt += A.text()
    txt += '.section .rodata,"a"\n'
    for d in descs: txt += ".p2align 6\n" + d
    open(out, "w").write(txt)
    print("wrote", out, len(txt), "bytes")
if __name__ == "__main__":
    build(sys.argv[2:], sys.argv[1])
```
